```python
import torch

def _softmax(x, axis=-1):
    return torch.softmax(x, dim=axis)
def _gelu(x):
    return torch.nn.functional.gelu(x, approximate="tanh")
def _silu(x):
    return torch.nn.functional.silu(x)
def _sigmoid(x):
    return torch.sigmoid(x)
def _layernorm(x, axis=-1, eps=1e-5):
    m = x.mean(dim=axis, keepdim=True)
    v = x.var(dim=axis, keepdim=True, unbiased=False)
    return (x - m) / torch.sqrt(v + eps)
def _scatter_add(tgt, idx, src, axis=0):
    return tgt.clone().index_add_(axis, idx, src)
def _segment_sum(src, seg, n):
    out = torch.zeros((n,) + src.shape[1:], dtype=src.dtype)
    return out.index_add_(0, seg, src)
def _pad(x, pw):
    flat = tuple(v for pair in reversed(pw) for v in pair)
    return torch.nn.functional.pad(x, flat)

kernel_name = 'standalone__mha_softmax__near_ridge'

def setup_inputs():

    _w = (lambda a: (lambda t: t.to(torch.bfloat16) if t.is_floating_point() else t)(torch.as_tensor(a)))
    B, H, Sq, Sk, D = 16, 32, 384, 1024, 128
    return {
        "q": _w((lambda *s: torch.randn(*s, dtype=torch.bfloat16) * 0.8)(B, H, Sq, D)),
        "k": _w((lambda *s: torch.randn(*s, dtype=torch.bfloat16) * 0.8)(B, H, Sk, D)),
        "v": _w((lambda *s: torch.randn(*s, dtype=torch.bfloat16) * 0.05)(B, H, Sk, D)),
    }

def reference(q, k, v):
    scale = q.shape[-1] ** -0.5
    scores = torch.einsum("bhqd,bhkd->bhqk", q, k) * scale
    p = _softmax(scores, axis=-1)
    return torch.einsum("bhqk,bhkd->bhqd", p, v)
```

```python
import re


def R(kind, i, n=1):
    if n == 1:
        return "%s%d" % (kind, i)
    return "%s[%d:%d]" % (kind, i, i + n - 1)


def regs(kind, i, n=1):
    return ["%s%d" % (kind, i + k) for k in range(n)]


class Ins:
    __slots__ = ("text", "kind", "reads", "writes", "tag", "need", "srcc", "cost", "exp", "prod")

    def __init__(self, text, kind, reads=(), writes=(), tag=None, need=None, srcc=()):
        self.text = text
        self.kind = kind
        self.reads = set(reads)
        self.writes = set(writes)
        self.tag = tag
        self.need = need
        self.srcc = set(srcc)
        self.exp = {}
        self.prod = {}

    def flow(self, exp=None, prod=None):
        if exp:
            self.exp.update(exp)
        if prod:
            self.prod.update(prod)
        return self

    def __repr__(self):
        return self.text


def _opregs(op):
    op = op.strip().lstrip("-")
    m = re.match(r"^abs\((.*)\)$", op)
    if m:
        op = m.group(1)
    m = re.match(r"^([vas])\[(\d+):(\d+)\]$", op)
    if m:
        return ["%s%d" % (m.group(1), i) for i in range(int(m.group(2)), int(m.group(3)) + 1)]
    m = re.match(r"^([vas])(\d+)$", op)
    if m:
        return [op]
    if op in ("vcc", "m0", "exec", "scc"):
        return [op]
    return []


def valu(op, dst, *srcs, mods="", kind=None, rmw=False):
    k = kind
    if k is None:
        k = "trans" if op.split("_")[1] in ("exp", "rcp", "log", "rsq", "sqrt") else "valu"
    rd = []
    for s in srcs:
        rd += _opregs(s)
    wr = _opregs(dst)
    if rmw:
        rd += wr
    return Ins("%s %s, %s%s" % (op, dst, ", ".join(srcs), (" " + mods) if mods else ""), k, rd, wr)


def perm32(a, b):
    return Ins("v_permlane32_swap_b32 %s, %s" % (a, b), "perm", [a, b], [a, b])


def salu(op, dst, *srcs):
    rd = []
    for s in srcs:
        rd += _opregs(s)
    wr = _opregs(dst) if dst else []
    if dst:
        t = "%s %s, %s" % (op, dst, ", ".join(srcs))
    else:
        t = "%s %s" % (op, ", ".join(srcs))
    return Ins(t, "salu", rd, wr + ["scc"])


def mfma(d, a, b, c):
    rd = _opregs(a) + _opregs(b) + _opregs(c)
    return Ins("v_mfma_f32_32x32x16_bf16 %s, %s, %s, %s" % (d, a, b, c), "mfma", rd, _opregs(d), srcc=_opregs(c))


def ds_read(op, dst, addr, off, tag):
    return Ins("%s %s, %s offset:%d" % (op, dst, addr, off), "ds_r", [addr], _opregs(dst), tag=tag)


def ds_write(op, addr, src, off, tag=None):
    return Ins("%s %s, %s offset:%d" % (op, addr, src, off), "ds_w", [addr] + _opregs(src), [], tag=tag)


def dma(voff, srd, soff, off, tag, nt=False):
    return Ins("buffer_load_dwordx4 %s, %s, %s offen offset:%d%s lds" % (voff, srd, soff, off, " nt" if nt else ""),
               "dma", [voff, "m0"] + _opregs(srd) + _opregs(soff), [], tag=tag)


def vload(dst, voff, srd, soff, off, tag, nt=False):
    return Ins("buffer_load_dwordx4 %s, %s, %s, %s offen offset:%d%s" % (dst, voff, srd, soff, off, " nt" if nt else ""),
               "vload", [voff] + _opregs(srd) + _opregs(soff), _opregs(dst), tag=tag)


def vstore(src, voff, srd, soff, off, tag=None, nt=False):
    return Ins("buffer_store_dwordx4 %s, %s, %s, %s offen offset:%d%s" % (src, voff, srd, soff, off, " nt" if nt else ""),
               "vstore", [voff] + _opregs(src) + _opregs(srd) + _opregs(soff), [], tag=tag)


def wait_for(*tags):
    return Ins("WAITSYM", "waitsym", need=list(tags))


def raw(text, kind="salu", reads=(), writes=()):
    return Ins(text, kind, reads, writes)


def barrier():
    return Ins("s_barrier", "barrier")


def nop(n):
    return Ins("s_nop %d" % (n - 1), "nop")


VALU_KINDS = ("valu", "trans", "perm")


def states(ins):
    if ins.kind == "nop":
        return int(ins.text.split()[1]) + 1
    if ins.kind == "label":
        return 0
    return 1


def resolve(prog, auto_lgkm=True, verbose=False):
    out = []
    lg = []
    vm = []
    pend = {}
    pos = 0
    last_mfma_w = {}
    last_mfma_c = {}
    last_valu_w = {}
    last_trans_w = {}
    last_salu_m0 = -100
    last_store_data = {}
    last_valu_sgpr = {}
    nnop = 0

    def emit(i):
        nonlocal pos
        out.append(i)
        pos += states(i)

    def wait_counts(need_lg, need_vm):
        parts = []
        if need_vm is not None:
            n = len(vm) - 1 - need_vm
            n = min(n, 63)
            parts.append("vmcnt(%d)" % n)
            done = vm[: len(vm) - n]
            del vm[: len(vm) - n]
            for d in done:
                for r in d.writes:
                    if r in pend and pend[r][1] is d:
                        del pend[r]
        if need_lg is not None:
            n = len(lg) - 1 - need_lg
            n = min(n, 15)
            parts.append("lgkmcnt(%d)" % n)
            done = lg[: len(lg) - n]
            del lg[: len(lg) - n]
            for d in done:
                for r in d.writes:
                    if r in pend and pend[r][1] is d:
                        del pend[r]
        if parts:
            w = Ins("s_waitcnt " + " ".join(parts), "wait")
            emit(w)
            return w
        return None

    for ins in prog:
        if ins.kind == "waitsym":
            nl = nv = None
            for t in ins.need:
                if t == "LGKM0":
                    if lg:
                        nl = len(lg) - 1
                    continue
                if t == "VM0":
                    if vm:
                        nv = len(vm) - 1
                    continue
                for idx, o in enumerate(lg):
                    if o.tag == t:
                        nl = idx if nl is None else max(nl, idx)
                for idx, o in enumerate(vm):
                    if o.tag == t:
                        nv = idx if nv is None else max(nv, idx)
            if "ALWAYS" in ins.need:
                nvv = len(vm) - 1 - nv if nv is not None else len(vm)
                nvv = min(nvv, 63)
                w = wait_counts(nl, nv)
                if w is not None:
                    out.pop()
                    pos -= 1
                emit(Ins("s_waitcnt vmcnt(%d) lgkmcnt(0)" % nvv, "wait"))
                continue
            wait_counts(nl, nv)
            continue
        if ins.kind == "wait":
            if "vmcnt(0)" in ins.text:
                wait_counts(None, len(vm) - 1) if vm else None
            if "lgkmcnt(0)" in ins.text:
                wait_counts(len(lg) - 1, None) if lg else None
            emit(ins)
            continue
        nl = nv = None
        for r in (ins.reads | ins.writes):
            if r in pend:
                cls, o = pend[r]
                if cls == "lg":
                    idx = lg.index(o)
                    nl = idx if nl is None else max(nl, idx)
                else:
                    idx = vm.index(o)
                    nv = idx if nv is None else max(nv, idx)
        if nl is not None or nv is not None:
            wait_counts(nl, nv)
        need = 0

        def req(p, n):
            nonlocal need
            d = pos - p - 1
            if d < n:
                need = max(need, n - d)

        k = ins.kind
        if k in VALU_KINDS or k in ("ds_r", "ds_w", "vload", "vstore", "dma"):
            for r in ins.reads | ins.writes:
                if r in last_mfma_w:
                    req(last_mfma_w[r], 12)
        if k in VALU_KINDS:
            for r in ins.writes:
                if r in last_mfma_c:
                    req(last_mfma_c[r], 7)
                if r in last_store_data:
                    req(last_store_data[r], 2)
            for r in ins.reads:
                if r in last_trans_w and k != "trans":
                    req(last_trans_w[r], 1)
                if r in last_valu_sgpr:
                    req(last_valu_sgpr[r], 2)
            if k == "perm":
                for r in ins.reads:
                    if r in last_valu_w:
                        req(last_valu_w[r], 2)
            if ins.text.startswith("v_readfirstlane") or ins.text.startswith("v_readlane"):
                for r in ins.reads:
                    if r in last_valu_w:
                        req(last_valu_w[r], 1)
        if k == "mfma":
            for r in ins.reads:
                if r in last_valu_w:
                    req(last_valu_w[r], 2)
                if r in last_mfma_w:
                    if r in ins.srcc and r in ins.writes:
                        pass
                    elif r in ins.srcc:
                        req(last_mfma_w[r], 10)
                    else:
                        req(last_mfma_w[r], 12)
        if k == "dma":
            req(last_salu_m0, 1)
        if k in ("dma", "vload", "vstore"):
            for r in ins.reads:
                if r in last_valu_sgpr:
                    req(last_valu_sgpr[r], 5)
        if k == "salu":
            for r in ins.reads:
                if r in last_valu_sgpr:
                    req(last_valu_sgpr[r], 2)
        while need > 0:
            n = min(need, 16)
            emit(nop(n))
            nnop += n
            need -= n
        p = pos
        emit(ins)
        if k == "mfma":
            for r in ins.writes:
                last_mfma_w[r] = p
                last_valu_w.pop(r, None)
                last_trans_w.pop(r, None)
            for r in ins.srcc:
                last_mfma_c[r] = p
        elif k in VALU_KINDS:
            for r in ins.writes:
                if r[0] == "s" or r == "vcc":
                    last_valu_sgpr[r] = p
                else:
                    last_valu_w[r] = p
                    last_mfma_w.pop(r, None)
                    if k == "trans":
                        last_trans_w[r] = p
                    else:
                        last_trans_w.pop(r, None)
        elif k == "salu":
            if "m0" in ins.writes:
                last_salu_m0 = p
            for r in ins.writes:
                last_valu_sgpr.pop(r, None)
        if k in ("ds_r", "ds_w"):
            lg.append(ins)
            for r in ins.writes:
                pend[r] = ("lg", ins)
                last_mfma_w.pop(r, None)
                last_valu_w.pop(r, None)
        if k in ("vload", "vstore", "dma"):
            vm.append(ins)
            for r in ins.writes:
                pend[r] = ("vm", ins)
                last_mfma_w.pop(r, None)
                last_valu_w.pop(r, None)
            if k == "vstore":
                for r in ins.reads:
                    if r[0] == "v":
                        last_store_data[r] = p
    if verbose:
        print("inserted nop states:", nnop)
    return out


def check_flow(prog):
    val = {}
    nerr = 0
    for i, ins in enumerate(prog):
        for r, t in ins.exp.items():
            if val.get(r) != t:
                nerr += 1
                if nerr < 20:
                    print("FLOW ERROR at %d: %s expects %s=%s but holds %s" % (i, ins.text, r, t, val.get(r)))
        for r in ins.writes:
            val[r] = ins.prod.get(r, ("?", i))
    assert nerr == 0, "dataflow errors: %d" % nerr
```

```python
import sys, struct, math
from asmlib import *

KNAME = "standalone__mha_softmax__near_ridge_kernel"

CFG = dict(
    nt_kv=False,
    nt_q=False,
    nt_o=False,
    F=2,
    bar_gap=5,
    safe=True,
    force_safe=False,
    ofin=True,
)


def f2u(x):
    return struct.unpack("<I", struct.pack("<f", x))[0]


S_K, S_V, S_Q, S_O = "s[8:11]", "s[12:15]", "s[16:19]", "s[20:23]"
sC, sTHR, sGOFF, sWR, sRD, sDELTA, sCNT = "s28", "s29", "s30", "s31", "s32", "s33", "s34"
sTMP, sTMP2 = "s35", "s36"
sW = "s46"
sFLAG = ["s[42:43]", "s[44:45]"]
sQOFF = ["s48", "s49", "s50", "s51", "s52", "s53"]
vKA = [1 + i for i in range(8)]
vVA = [9 + i for i in range(4)]
vKD = [13 + i for i in range(4)]
vVD = 17
vQO = 18
vL = [19, 20, 21]
vNM = [22, 23, 24]
vT0, vT1 = 25, 0
vCHK = 26
vRI = 28
vT2, vT3 = 30, 31
SB = [32, 48]


def O(qt, dt):
    return 64 + 64 * qt + 16 * dt


def KF(s):
    return 192 + 4 * s


def VF(f):
    return 224 + 4 * f


def QF(hd, qt, s):
    return 96 * hd + 32 * qt + 4 * s


LDS_V = 65536
LDS_FLAG = 131072
LDS_TOTAL = 131072 + 256


class TL:
    def __init__(self):
        self.m = {}
        self.g = {}
        self.pre = {}

    def slot(self, i, ins):
        assert i not in self.m, i
        self.m[i] = ins

    def gap(self, i, prio, ins):
        self.g.setdefault(i, []).append((prio, len(self.g.get(i, [])), ins))

    def before(self, i, ins):
        self.pre.setdefault(i, []).append(ins)

    def emit(self, lo, hi):
        out = []
        for i in range(lo, hi):
            out += self.pre.get(i, [])
            if i in self.m:
                out.append(self.m[i])
            for _, _, ins in sorted(self.g.get(i, []), key=lambda t: (t[0], t[1])):
                out.append(ins)
        return out


P_CVT, P_EXP, P_FMA, P_ADD, P_MEM, P_SALU, P_LATE = 0, 1, 2, 3, 4, 5, 9


def max_ops(sb, qt, hd, blk):
    S = lambda e: "v%d" % (sb + e)
    a, b = "v%d" % vT0, "v%d" % vT2
    ops = [
        valu("v_max3_f32", a, S(0), S(1), S(2)),
        valu("v_max3_f32", b, S(3), S(4), S(5)),
        valu("v_max3_f32", a, a, S(6), S(7)),
        valu("v_max3_f32", b, b, S(8), S(9)),
        valu("v_max3_f32", a, a, S(10), S(11)),
        valu("v_max3_f32", b, b, S(12), S(13)),
        valu("v_max3_f32", a, a, S(14), S(15)),
        valu("v_max_f32", a, a, b),
        valu("v_mov_b32", b, a),
        perm32(a, b),
        valu("v_max_f32", a, a, b),
        valu("v_mul_f32", "v%d" % vNM[qt], sC, a),
        valu("v_sub_f32", "v%d" % vNM[qt], "0", "v%d" % vNM[qt]).flow(None, {"v%d" % vNM[qt]: ("NM", hd, qt)}),
    ]
    for op in ops[:7]:
        op.flow({r: ("S", hd, blk, 7) for r in op.reads if sb <= int(r[1:]) < sb + 16})
    return ops


def epilogue_ops(hd, qt):
    ops = []
    l = "v%d" % vL[qt]
    t = "v%d" % vT3
    ri = "v%d" % vRI
    ops.append(valu("v_mov_b32", t, l).flow({l: ("L", hd, qt, 511)}))
    ops.append(perm32(l, t))
    ops.append(valu("v_add_f32", l, l, t))
    ops.append(valu("v_rcp_f32", ri, l))
    ops.append(valu("v_cmp_ngt_f32", "vcc", sTHR, l))
    ops.append(salu("s_or_b64", sFLAG[hd], sFLAG[hd], "vcc"))
    for dt in range(4):
        for x in range(2):
            b = O(qt, dt) + 8 * x
            for u in range(4):
                ops.append(valu("v_pk_mul_f32", R("v", b + 2 * u, 2), R("v", b + 2 * u, 2), R("v", vRI, 2), mods="op_sel_hi:[1,0]").flow(
                    {r: ("O", hd, qt, 63) for r in regs("v", b + 2 * u, 2)}))
            if CFG["ofin"]:
                for u in range(4):
                    ops.append(valu("v_pk_fma_f32", R("v", vCHK, 2), R("v", b + 2 * u, 2), "0", R("v", vCHK, 2)))
            for u in range(4):
                ops.append(valu("v_cvt_pk_bf16_f32", "v%d" % (b + u), "v%d" % (b + 2 * u), "v%d" % (b + 2 * u + 1)))
            ops.append(vstore(R("v", b, 4), "v%d" % vQO, S_O, sQOFF[3 * hd + qt], 64 * dt + 32 * x, tag=("ost", hd), nt=CFG["nt_o"]))
    return ops


def k_reads(tl, J, gap0, step=2):
    for s in range(8):
        tl.gap(gap0 + step * s, P_MEM, ds_read("ds_read_b128", R("a", KF(s), 4), "v%d" % vKA[s], (J & 1) * 8192, tag=("kf", J, s)).flow(
            {"v%d" % vKA[s]: ("ka", J >> 1)}, {r: ("kf", J, s) for r in regs("a", KF(s), 4)}))


def v_reads(tl, J, gap0, dense=False):
    for t in range(2):
        for dt in range(4):
            f = 4 * t + dt
            for x in range(2):
                g = gap0 + (f if dense else 2 * f + x)
                tl.gap(g, P_MEM, ds_read("ds_read_b64_tr_b16", R("a", VF(f) + 2 * x, 2), "v%d" % vVA[dt],
                                         (J & 1) * 8192 + t * 4096 + x * 2048, tag=("vf", J, f)).flow(
                    {"v%d" % vVA[dt]: ("va", J >> 1)}, {r: ("vf", J, f, x) for r in regs("a", VF(f) + 2 * x, 2)}))


def dma_k(stage):
    ops = [salu("s_mov_b32", "m0", sWR)]
    for i in range(4):
        ops.append(dma("v%d" % vKD[i], S_K, sGOFF, 1024 * i, tag=("dma", stage), nt=CFG["nt_kv"]))
    return ops


def dma_v(stage):
    ops = [salu("s_add_u32", "m0", sWR, str(LDS_V))]
    for i in range(4):
        ops.append(dma("v%d" % vVD, S_V, sGOFF, 1024 * i, tag=("dma", stage), nt=CFG["nt_kv"]))
    ops.append(salu("s_add_u32", sWR, sWR, "0x4000"))
    ops.append(salu("s_and_b32", sWR, sWR, "0xffff"))
    ops.append(salu("s_add_u32", sGOFF, sGOFF, "0x4000"))
    return ops


def q_loads(hd, qts=(0, 1, 2)):
    ops = []
    for qt in qts:
        for s in range(8):
            ops.append(vload(R("a", QF(hd, qt, s), 4), "v%d" % vQO, S_Q, sQOFF[3 * hd + qt], 32 * s, tag=("q", hd, qt), nt=CFG["nt_q"]).flow(
                None, {r: ("q", hd, qt, s) for r in regs("a", QF(hd, qt, s), 4)}))
    return ops


def build_head(hd):
    tl = TL()
    F = CFG["F"]
    last = hd == 1
    for b in range(96):
        j, qt = divmod(b, 3)
        J = 32 * hd + j
        sb = SB[b % 2]
        for s in range(8):
            sl = 16 * (b - 1) + 8 + s
            if qt == 0 and s in (0, 4):
                tl.before(sl, wait_for(("kf", J, s + 3)))
            ex = {r: ("kf", J, s) for r in regs("a", KF(s), 4)}
            ex.update({r: ("q", hd, qt, s) for r in regs("a", QF(hd, qt, s), 4)})
            if s:
                ex.update({r: ("S", hd, b, s - 1) for r in regs("v", sb, 16)})
            tl.slot(sl, mfma(R("v", sb, 16), R("a", KF(s), 4), R("a", QF(hd, qt, s), 4), "0" if s == 0 else R("v", sb, 16)).flow(
                ex, {r: ("S", hd, b, s) for r in regs("v", sb, 16)}))
        for t in range(2):
            for dt in range(4):
                f = 4 * t + dt
                sl = 16 * (b + 1) + f
                if qt == 0 and f in (0, 4):
                    tl.before(sl, wait_for(("vf", J, f + 3)))
                c = "0" if (j == 0 and t == 0) else R("v", O(qt, dt), 16)
                ex = {r: ("vf", J, f, (i >> 1)) for i, r in enumerate(regs("a", VF(f), 4))}
                ex.update({"v%d" % (sb + 8 * t + u): ("P", hd, b, 4 * t + u) for u in range(4)})
                if c != "0":
                    ex.update({r: ("O", hd, qt, 2 * j + t - 1) for r in regs("v", O(qt, dt), 16)})
                tl.slot(sl, mfma(R("v", O(qt, dt), 16), R("a", VF(f), 4), R("v", sb + 8 * t, 4), c).flow(
                    ex, {r: ("O", hd, qt, 2 * j + t) for r in regs("v", O(qt, dt), 16)}))
        if b == 0:
            gof = lambda e: (11 + (e * 3) // 8) if e < 8 else (14 + ((e - 8) * 4) // 8)
            for i, op in enumerate(max_ops(sb, qt, hd, b)):
                tl.gap(9 + (i * 2) // 13, P_CVT - 1, op)
        elif b in (1, 2):
            gof = lambda e, b=b: 16 * b + 4 + (e * 14) // 16
            for i, op in enumerate(max_ops(sb, qt, hd, b)):
                tl.gap(16 * b + 2 + (i * 2) // 13, P_LATE, op)
        elif b == 95:
            gof = lambda e, b=b: 16 * b + F + e // 2
        else:
            gof = lambda e, b=b: 16 * b + F + e
        for e in range(16):
            r = "v%d" % (sb + e)
            g = gof(e)
            tl.gap(g, P_FMA, valu("v_fma_f32", r, r, sC, "v%d" % vNM[qt]).flow({r: ("S", hd, b, 7), "v%d" % vNM[qt]: ("NM", hd, qt)}, {r: ("X", hd, b, e)}))
            tl.gap(g + 1, P_EXP, valu("v_exp_f32", r, r).flow({r: ("X", hd, b, e)}, {r: ("E", hd, b, e)}))
            if j == 0 and e == 0:
                tl.gap(g + 2, P_ADD, valu("v_mov_b32", "v%d" % vL[qt], r).flow({r: ("E", hd, b, e)}, {"v%d" % vL[qt]: ("L", hd, qt, 0)}))
            else:
                tl.gap(g + 2, P_ADD, valu("v_add_f32", "v%d" % vL[qt], "v%d" % vL[qt], r).flow(
                    {r: ("E", hd, b, e), "v%d" % vL[qt]: ("L", hd, qt, 16 * j + e - 1)}, {"v%d" % vL[qt]: ("L", hd, qt, 16 * j + e)}))
            if e & 1:
                u = e // 2
                d = sb + (u if u < 4 else 8 + (u - 4))
                pr = P_CVT if gof(e - 1) + 2 < g + 2 else P_ADD + 0.5
                tl.gap(g + 2, pr, valu("v_cvt_pk_bf16_f32", "v%d" % d, "v%d" % (sb + e - 1), r).flow(
                    {r: ("E", hd, b, e), "v%d" % (sb + e - 1): ("E", hd, b, e - 1)}, {"v%d" % d: ("P", hd, b, u)}))
        if qt == 2 and not (last and j == 31):
            k_reads(tl, J + 1, 16 * (b - 1) + 8)
            v_reads(tl, J + 1, 16 * (b + 1))
    for k in range(0, 17):
        gk = 16 * hd + k
        p0 = 6 * k - 2
        if k >= 1 and not (last and k == 16):
            g = 16 * p0 + CFG["bar_gap"]
            tl.gap(g, P_LATE + 1, wait_for(("dma", gk), "LGKM0", "ALWAYS"))
            tl.gap(g, P_LATE + 2, barrier())
        do_dma = not (last and k == 16)
        if do_dma and not (hd == 1 and k == 0):
            ops = dma_k(gk + 3)
            g = 16 * (6 * k - 1) + 8
            tl.gap(g - 1, P_SALU, ops[0])
            for i in range(4):
                tl.gap(g + 2 * i, P_MEM, ops[1 + i])
        if do_dma and k < 16:
            ops = dma_v(gk + 3)
            g = 16 * (6 * k + 1)
            tl.gap(g - 1, P_SALU, ops[0])
            for i in range(4):
                tl.gap(g + 2 * i, P_MEM, ops[1 + i])
            tl.gap(g + 7, P_SALU, ops[5])
            tl.gap(g + 9, P_SALU, ops[6])
            tl.gap(g + 11, P_SALU, ops[7])
        if k < 16:
            g = 16 * (6 * k + 2) + 8
            tl.gap(g - 4, P_SALU, salu("s_add_u32", sTMP, sRD, "0x4000"))
            tl.gap(g - 3, P_SALU, salu("s_and_b32", sTMP, sTMP, "0xffff"))
            tl.gap(g - 2, P_SALU, salu("s_sub_u32", sDELTA, sTMP, sRD).flow(None, {sDELTA: ("delta", gk)}))
            tl.gap(g - 1, P_SALU, salu("s_mov_b32", sRD, sTMP))
            for s in range(8):
                tl.gap(g + s, P_MEM, valu("v_add_u32", "v%d" % vKA[s], sDELTA, "v%d" % vKA[s]).flow(
                    {"v%d" % vKA[s]: ("ka", gk), sDELTA: ("delta", gk)}, {"v%d" % vKA[s]: ("ka", gk + 1)}))
            g = 16 * (6 * k + 4)
            for d in range(4):
                tl.gap(g + d, P_MEM, valu("v_add_u32", "v%d" % vVA[d], sDELTA, "v%d" % vVA[d]).flow(
                    {"v%d" % vVA[d]: ("va", gk), sDELTA: ("delta", gk)}, {"v%d" % vVA[d]: ("va", gk + 1)}))
    if hd == 0:
        ops = q_loads(1)
        g0 = 16 * 88 + CFG["bar_gap"] + 1
        gaps = []
        g = g0
        cand = [16 * 88 + 6, 16 * 88 + 7] + [16 * 89 + 9 + 2 * i for i in range(4)] + [16 * 91 + 1 + 2 * i for i in range(4)] + \
               [16 * 88 + 9 + 2 * i for i in range(4)] + [16 * 89 + 1 + 2 * i for i in range(3)]
        cand = sorted(cand)
        cand = cand + [16 * 91 + 9 + 2 * i for i in range(4)] + [16 * 92 + 1 + 2 * i for i in range(3)]
        assert len(cand) >= 24, len(cand)
        for op, g in zip(ops, cand):
            tl.gap(g, P_MEM, op)
    ep0 = epilogue_ops(hd, 0)
    n = len(ep0)
    for i, op in enumerate(ep0):
        tl.gap(16 * 96 + (i * 8) // n, P_LATE, op)
    g = 16 * 97
    for qt in (1, 2):
        for op in epilogue_ops(hd, qt):
            tl.gap(g, P_LATE, op)
        g += 1
    if CFG["ofin"]:
        tl.gap(g, P_LATE, valu("v_add_f32", "v%d" % vCHK, "v%d" % vCHK, "v%d" % (vCHK + 1)))
        tl.gap(g, P_LATE, valu("v_cmp_neq_f32", "vcc", "0", "v%d" % vCHK))
        tl.gap(g, P_LATE, salu("s_or_b64", sFLAG[hd], sFLAG[hd], "vcc"))
        if hd == 0:
            tl.gap(g, P_LATE, valu("v_mov_b32", "v%d" % vCHK, "0"))
            tl.gap(g, P_LATE, valu("v_mov_b32", "v%d" % (vCHK + 1), "0"))
    return tl


def setup():
    o = []
    a = o.append
    a(raw("s_cmp_ge_u32 s2, 0x100"))
    a(raw("s_cbranch_scc1 L_end", "branch"))
    a(raw("s_load_dwordx4 s[4:7], s[0:1], 0"))
    a(raw("s_load_dwordx4 s[24:27], s[0:1], 16"))
    V = lambda i: "v%d" % i
    a(valu("v_and_b32", "v32", "63", "v0"))
    a(valu("v_lshrrev_b32", "v33", "6", "v0"))
    a(valu("v_and_b32", "v34", "31", "v32"))
    a(valu("v_lshrrev_b32", "v35", "5", "v32"))
    a(valu("v_readfirstlane_b32", sW, "v33"))
    a(valu("v_and_b32", "v36", "15", "v32"))
    a(valu("v_lshrrev_b32", "v37", "4", "v32"))
    a(valu("v_lshlrev_b32", "v38", "8", "v34"))
    for s in range(8):
        a(valu("v_add_u32", "v39", str(2 * s), "v35"))
        a(valu("v_xor_b32", "v39", "v39", "v36"))
        a(valu("v_lshl_add_u32", V(vKA[s]), "v39", "4", "v38").flow(None, {V(vKA[s]): ("ka", 0)}))
    a(valu("v_lshrrev_b32", "v40", "2", "v36"))
    a(valu("v_and_b32", "v41", "3", "v36"))
    a(valu("v_and_b32", "v42", "1", "v41"))
    a(valu("v_lshlrev_b32", "v42", "1", "v42"))
    a(valu("v_lshrrev_b32", "v43", "1", "v41"))
    a(valu("v_or_b32", "v42", "v42", "v43"))
    a(valu("v_lshlrev_b32", "v42", "3", "v42"))
    a(valu("v_and_b32", "v43", "1", "v37"))
    a(valu("v_lshl_add_u32", "v42", "v43", "5", "v42"))
    a(valu("v_lshl_add_u32", "v43", "v35", "2", "v40"))
    a(valu("v_lshl_add_u32", "v42", "v43", "8", "v42"))
    a(valu("v_add_u32", "v42", hex(LDS_V), "v42"))
    for dt in range(4):
        a(valu("v_xor_b32", "v43", str(dt), "v40"))
        a(valu("v_lshl_add_u32", V(vVA[dt]), "v43", "6", "v42").flow(None, {V(vVA[dt]): ("va", 0)}))
    a(valu("v_lshlrev_b32", "v44", "8", "v37"))
    a(valu("v_xor_b32", "v45", "v36", "v37"))
    for i in range(4):
        a(valu("v_xor_b32", "v46", str(4 * i), "v45"))
        a(valu("v_lshl_add_u32", V(vKD[i]), "v46", "4", "v44"))
    a(valu("v_lshlrev_b32", "v46", "2", "v37"))
    a(valu("v_xor_b32", "v46", "v46", "v36"))
    a(valu("v_lshl_add_u32", V(vVD), "v46", "4", "v44"))
    a(valu("v_mul_u32_u24", "v46", "96", "v33"))
    a(valu("v_add_u32", "v46", "v46", "v34"))
    a(valu("v_lshlrev_b32", "v46", "8", "v46"))
    a(valu("v_lshl_add_u32", V(vQO), "v35", "4", "v46"))
    a(valu("v_mov_b32", V(vCHK), "0"))
    a(valu("v_mov_b32", V(vCHK + 1), "0"))
    c = (128 ** -0.5) * math.log2(math.e)
    a(salu("s_mov_b32", sC, hex(f2u(c))))
    a(salu("s_mov_b32", sTHR, hex(f2u(2.0 ** 60))))
    a(salu("s_lshl_b32", sGOFF, sW, "12"))
    a(salu("s_mov_b32", sWR, sGOFF))
    a(salu("s_mov_b32", sRD, "0"))
    a(salu("s_mov_b64", sFLAG[0], "0"))
    a(salu("s_mov_b64", sFLAG[1], "0"))
    for hd in range(2):
        for qt in range(3):
            a(salu("s_mov_b32", sQOFF[3 * hd + qt], hex(hd * 98304 + qt * 8192)))
    a(salu("s_lshl_b32", "s3", "s2", "19"))
    a(salu("s_mul_i32", sTMP, "s2", hex(196608)))
    a(raw("s_waitcnt lgkmcnt(0)", "wait"))
    for (base, lo, hi, off, size) in ((8, "s6", "s7", "s3", 524288), (12, "s24", "s25", "s3", 524288),
                                      (16, "s4", "s5", sTMP, 196608), (20, "s26", "s27", sTMP, 196608)):
        a(salu("s_add_u32", "s%d" % base, lo, off))
        a(salu("s_addc_u32", "s%d" % (base + 1), hi, "0"))
        a(salu("s_mov_b32", "s%d" % (base + 2), hex(size)))
        a(salu("s_mov_b32", "s%d" % (base + 3), "0x20000"))
    return o


def startup():
    o = []
    o += dma_k(0)
    o += q_loads(0, (0,))
    o += dma_v(0)
    o += q_loads(0, (1, 2))
    for st in (1, 2):
        o += dma_k(st)
        o += dma_v(st)
    o.append(wait_for(("dma", 0)))
    o.append(barrier())
    tl = TL()
    k_reads(tl, 0, 0, step=1)
    v_reads(tl, 0, 8)
    o += tl.emit(0, 32)
    return o


def marker(tag):
    return Ins("", "label", tag=tag)


def safe_path():
    T = []
    a = T.append
    a("L_flags:")
    a("s_cmp_lg_u64 %s, 0" % sFLAG[0])
    a("s_cselect_b32 s60, 1, 0")
    a("s_cmp_lg_u64 %s, 0" % sFLAG[1])
    a("s_cselect_b32 s61, 2, 0")
    a("s_or_b32 s60, s60, s61")
    if CFG["force_safe"]:
        a("s_mov_b32 s60, 3")
    a("v_mov_b32 v32, s60")
    a("s_lshl_b32 s61, %s, 2" % sW)
    a("s_add_u32 s61, s61, %d" % LDS_FLAG)
    a("v_mov_b32 v33, s61")
    a("ds_write_b32 v33, v32")
    a("v_mov_b32 v33, %d" % LDS_FLAG)
    a("s_waitcnt lgkmcnt(0)")
    a("s_barrier")
    a("ds_read_b128 v[36:39], v33")
    a("s_waitcnt lgkmcnt(0)")
    a("v_or_b32 v36, v36, v37")
    a("v_or_b32 v38, v38, v39")
    a("v_or_b32 v36, v36, v38")
    a("s_nop 1")
    a("v_readfirstlane_b32 s60, v36")
    a("s_nop 3")
    a("s_cmp_eq_u32 s60, 0")
    a("s_cbranch_scc1 L_end")
    a("s_waitcnt vmcnt(0)")
    for s in range(8):
        a("v_and_b32 v%d, 0x3fff, v%d" % (vKA[s], vKA[s]))
    for d in range(4):
        a("v_and_b32 v%d, 0x3fff, v%d" % (vVA[d], vVA[d]))
        a("v_add_u32 v%d, 0x%x, v%d" % (vVA[d], LDS_V, vVA[d]))
    a("s_mov_b32 s62, 0")
    a("L_safe_head:")
    a("s_lshr_b32 s61, s60, s62")
    a("s_and_b32 s61, s61, 1")
    a("s_cmp_eq_u32 s61, 0")
    a("s_cbranch_scc1 L_safe_next")
    a("s_mul_i32 s63, s62, 0x18000")
    a("s_add_u32 s64, s63, 0x2000")
    a("s_add_u32 s65, s63, 0x4000")
    for qt in range(3):
        for s in range(8):
            a("buffer_load_dwordx4 %s, v%d, %s, s%d offen offset:%d" % (R("a", QF(0, qt, s), 4), vQO, S_Q, 63 + qt, 32 * s))
    for qt in range(3):
        a("v_mov_b32 v%d, 0" % vL[qt])
        a("v_mov_b32 v%d, 0xff800000" % vNM[qt])
    for r in range(64, 256):
        a("v_mov_b32 v%d, 0" % r)
    a("s_lshl_b32 s66, s62, 18")
    a("s_lshl_b32 s67, %s, 12" % sW)
    a("s_add_u32 s66, s66, s67")
    a("s_mov_b32 s68, 0")
    a("L_safe_stage:")
    a("s_barrier")
    a("s_mov_b32 m0, s67")
    a("s_nop 0")
    for i in range(4):
        a("buffer_load_dwordx4 v%d, %s, s66 offen offset:%d lds" % (vKD[i], S_K, 1024 * i))
    a("s_add_u32 m0, s67, 0x%x" % LDS_V)
    a("s_nop 0")
    for i in range(4):
        a("buffer_load_dwordx4 v%d, %s, s66 offen offset:%d lds" % (vVD, S_V, 1024 * i))
    a("s_add_u32 s66, s66, 0x4000")
    a("s_waitcnt vmcnt(0)")
    a("s_barrier")
    for tile in range(2):
        for s in range(8):
            a("ds_read_b128 %s, v%d offset:%d" % (R("a", KF(s), 4), vKA[s], tile * 8192))
        for t in range(2):
            for dt in range(4):
                for x in range(2):
                    a("ds_read_b64_tr_b16 %s, v%d offset:%d" % (R("a", VF(4 * t + dt) + 2 * x, 2), vVA[dt], tile * 8192 + t * 4096 + x * 2048))
        a("s_waitcnt lgkmcnt(0)")
        for qt in range(3):
            sb = 32
            for s in range(8):
                a("v_mfma_f32_32x32x16_bf16 %s, %s, %s, %s" % (R("v", sb, 16), R("a", KF(s), 4), R("a", QF(0, qt, s), 4), "0" if s == 0 else R("v", sb, 16)))
            a("s_nop 15")
            a("v_max3_f32 v48, v32, v33, v34")
            for e in range(3, 15, 2):
                a("v_max3_f32 v48, v48, v%d, v%d" % (sb + e, sb + e + 1))
            a("v_max3_f32 v48, v48, v47, v%d" % vNM[qt])
            a("v_mov_b32 v49, v48")
            a("s_nop 1")
            a("v_permlane32_swap_b32 v48, v49")
            a("s_nop 1")
            a("v_max_f32 v48, v48, v49")
            a("v_sub_f32 v49, v%d, v48" % vNM[qt])
            a("v_mul_f32 v49, %s, v49" % sC)
            a("v_exp_f32 v49, v49")
            a("v_mov_b32 v%d, v48" % vNM[qt])
            a("v_mul_f32 v50, %s, v48" % sC)
            a("v_sub_f32 v50, 0, v50")
            a("v_mul_f32 v%d, v%d, v49" % (vL[qt], vL[qt]))
            for r in range(64):
                a("v_mul_f32 v%d, v%d, v49" % (O(qt, 0) + r, O(qt, 0) + r))
            for e in range(16):
                a("v_fma_f32 v%d, v%d, %s, v50" % (sb + e, sb + e, sC))
            for e in range(16):
                a("v_exp_f32 v%d, v%d" % (sb + e, sb + e))
            a("s_nop 0")
            for e in range(16):
                a("v_add_f32 v%d, v%d, v%d" % (vL[qt], vL[qt], sb + e))
            for u in range(8):
                d = sb + (u if u < 4 else 8 + u - 4)
                a("v_cvt_pk_bf16_f32 v%d, v%d, v%d" % (d, sb + 2 * u, sb + 2 * u + 1))
            a("s_nop 1")
            for t in range(2):
                for dt in range(4):
                    a("v_mfma_f32_32x32x16_bf16 %s, %s, %s, %s" % (R("v", O(qt, dt), 16), R("a", VF(4 * t + dt), 4), R("v", sb + 8 * t, 4), R("v", O(qt, dt), 16)))
            a("s_nop 15")
    a("s_add_u32 s68, s68, 1")
    a("s_cmp_lt_u32 s68, 16")
    a("s_cbranch_scc1 L_safe_stage")
    for qt in range(3):
        l = vL[qt]
        a("v_mov_b32 v48, v%d" % l)
        a("s_nop 1")
        a("v_permlane32_swap_b32 v%d, v48" % l)
        a("s_nop 1")
        a("v_add_f32 v%d, v%d, v48" % (l, l))
        a("v_rcp_f32 v48, v%d" % l)
        a("s_nop 0")
        for dt in range(4):
            for x in range(2):
                b = O(qt, dt) + 8 * x
                for u in range(8):
                    a("v_mul_f32 v%d, v%d, v48" % (b + u, b + u))
                for u in range(4):
                    a("v_cvt_pk_bf16_f32 v%d, v%d, v%d" % (b + u, b + 2 * u, b + 2 * u + 1))
                a("buffer_store_dwordx4 %s, v%d, %s, s%d offen offset:%d" % (R("v", b, 4), vQO, S_O, 63 + qt, 64 * dt + 32 * x))
    a("s_waitcnt vmcnt(0)")
    a("L_safe_next:")
    a("s_add_u32 s62, s62, 1")
    a("s_cmp_lt_u32 s62, 2")
    a("s_cbranch_scc1 L_safe_head")
    return T


def generate(path):
    prog = setup() + startup()
    for hd in range(2):
        tl = build_head(hd)
        nloop = 14 if hd == 0 else 15
        prog += tl.emit(-16, 16 * 4)
        for k in range(1, nloop + 1):
            prog.append(marker(("body", hd, k)))
            prog += tl.emit(16 * (6 * k - 2), 16 * (6 * k + 4))
        prog.append(marker(("tail", hd)))
        prog += tl.emit(16 * (6 * (nloop + 1) - 2), 16 * 100)
    check_flow(prog)
    res = resolve(prog, verbose=True)
    segs = []
    cur = ("pre",)
    lst = []
    for ins in res:
        if ins.kind == "label" and ins.tag is not None:
            segs.append((cur, lst))
            cur, lst = ins.tag, []
        else:
            lst.append(ins)
    segs.append((cur, lst))
    lines = []

    def put(lst):
        for ins in lst:
            lines.append("    " + ins.text)

    import re as _re
    i = 0
    while i < len(segs):
        tag, lst = segs[i]
        if tag[0] == "body":
            hd = tag[1]
            group = []
            while i < len(segs) and segs[i][0][0] == "body" and segs[i][0][1] == hd:
                group.append(segs[i][1])
                i += 1
            n = len(group[0])
            texts = []
            for g in group:
                if len(g) != n:
                    import difflib
                    for l in difflib.unified_diff([x.text for x in group[0]], [x.text for x in g], lineterm="", n=3):
                        print(l)
                assert len(g) == n, "body length mismatch hd%d: %d vs %d" % (hd, len(g), n)
            for idx in range(n):
                ts = set(g[idx].text for g in group)
                if len(ts) == 1:
                    texts.append(ts.pop())
                else:
                    assert all(t.startswith("s_waitcnt") for t in ts), ts
                    vals = {}
                    for t in ts:
                        for nm, v in _re.findall(r"(vmcnt|lgkmcnt)\((\d+)\)", t):
                            vals[nm] = min(vals.get(nm, 99), int(v))
                    texts.append("s_waitcnt " + " ".join("%s(%d)" % (k2, v) for k2, v in sorted(vals.items(), reverse=True)))
            lines.append("    s_mov_b32 %s, %d" % (sCNT, len(group)))
            lines.append("L_loop%d:" % hd)
            lines += ["    " + t for t in texts]
            lines.append("    s_sub_u32 %s, %s, 1" % (sCNT, sCNT))
            lines.append("    s_cmp_lg_u32 %s, 0" % sCNT)
            lines.append("    s_cbranch_scc1 L_loop%d" % hd)
            continue
        put(lst)
        i += 1
    if CFG["safe"]:
        lines += ["    " + t if not t.endswith(":") else t for t in safe_path()]
    hdr = open("standalone__mha_softmax__near_ridge.s.ref").read().split("\n")
    head = []
    for l in hdr:
        if l.startswith("; @launch"):
            head.append("; @launch grid=(256,1,1) block=(256,1,1) lds=%d" % LDS_TOTAL)
        elif l.startswith(";"):
            head.append(l)
        else:
            break
    txt = "\n".join(head) + """
.amdgcn_target "amdgcn-amd-amdhsa--gfx950"
.text
.globl %s
.p2align 8
.type %s,@function
%s:
""" % (KNAME, KNAME, KNAME)
    txt += "\n".join(lines)
    txt += """
L_end:
    s_endpgm
.section .rodata,"a"
.p2align 6
.amdhsa_kernel %s
  .amdhsa_next_free_vgpr 512
  .amdhsa_next_free_sgpr 96
  .amdhsa_accum_offset 256
  .amdhsa_group_segment_fixed_size 0
  .amdhsa_kernarg_size 48
  .amdhsa_user_sgpr_count 2
  .amdhsa_user_sgpr_kernarg_segment_ptr 1
  .amdhsa_system_sgpr_workgroup_id_x 1
.end_amdhsa_kernel
""" % KNAME
    open(path, "w").write(txt)


if __name__ == "__main__":
    out = sys.argv[1] if len(sys.argv) > 1 else "standalone__mha_softmax__near_ridge.s"
    for kv in sys.argv[2:]:
        k, v = kv.split("=")
        CFG[k] = eval(v)
    generate(out)
```
